```python
import torch

def _softmax(x, axis=-1):
    return torch.softmax(x, dim=axis)
def _gelu(x):
    return torch.nn.functional.gelu(x, approximate="tanh")
def _silu(x):
    return torch.nn.functional.silu(x)
def _sigmoid(x):
    return torch.sigmoid(x)
def _layernorm(x, axis=-1, eps=1e-5):
    m = x.mean(dim=axis, keepdim=True)
    v = x.var(dim=axis, keepdim=True, unbiased=False)
    return (x - m) / torch.sqrt(v + eps)
def _scatter_add(tgt, idx, src, axis=0):
    return tgt.clone().index_add_(axis, idx, src)
def _segment_sum(src, seg, n):
    out = torch.zeros((n,) + src.shape[1:], dtype=src.dtype)
    return out.index_add_(0, seg, src)
def _pad(x, pw):
    flat = tuple(v for pair in reversed(pw) for v in pair)
    return torch.nn.functional.pad(x, flat)

kernel_name = 'interleave_layers__spectral_fnet__swiglu_ffn__prompt'

def setup_inputs():

    _w = (lambda a: (lambda t: t.to(torch.bfloat16) if t.is_floating_point() else t)(torch.as_tensor(a)))
    def _A_setup():
        B, S, D = 1, 2048, 512
        ns = torch.arange(S)[:, None] * torch.arange(S)[None, :]
        nd = torch.arange(D)[:, None] * torch.arange(D)[None, :]
        Ws_re = torch.cos(-2.0 * torch.pi * ns / S).to(float)
        Ws_im = torch.sin(-2.0 * torch.pi * ns / S).to(float)
        Wd_re = torch.cos(-2.0 * torch.pi * nd / D).to(float)
        Wd_im = torch.sin(-2.0 * torch.pi * nd / D).to(float)
        return {
            "x": _w((lambda *s: torch.randn(*s, dtype=torch.bfloat16) * 0.05)(B, S, D)),
            "dft_seq_re": _w(Ws_re),
            "dft_seq_im": _w(Ws_im),
            "dft_hid_re": _w(Wd_re),
            "dft_hid_im": _w(Wd_im),
        }
    _A_in = _A_setup()

    def _B_setup():
        B, S, D, F = 1, 2048, 512, 1376
        return {
            "x": _w((lambda *s: torch.randn(*s, dtype=torch.bfloat16) * 0.05)(B, S, D)),
            "w_gate": _w((lambda *s: torch.randn(*s, dtype=torch.bfloat16) * 0.4)(D, F)),
            "w_up": _w((lambda *s: torch.randn(*s, dtype=torch.bfloat16) * 0.4)(D, F)),
            "w_down": _w((lambda *s: torch.randn(*s, dtype=torch.bfloat16) * 0.4)(F, D)),
        }
    _B_in = _B_setup()

    return {
        "A_x": _A_in["x"],
        "A_dft_seq_re": _A_in["dft_seq_re"],
        "A_dft_seq_im": _A_in["dft_seq_im"],
        "A_dft_hid_re": _A_in["dft_hid_re"],
        "A_dft_hid_im": _A_in["dft_hid_im"],
        "B_x": _B_in["x"],
        "B_w_gate": _B_in["w_gate"],
        "B_w_up": _B_in["w_up"],
        "B_w_down": _B_in["w_down"],
    }

def reference(A_x, A_dft_seq_re, A_dft_seq_im, A_dft_hid_re, A_dft_hid_im, B_x, B_w_gate, B_w_up, B_w_down):
    def _A_ref(x, dft_seq_re, dft_seq_im, dft_hid_re, dft_hid_im):
        a = torch.einsum("bsd,ed->bse", x, dft_hid_re)
        b = torch.einsum("bsd,ed->bse", x, dft_hid_im)
        y = torch.einsum("ts,bse->bte", dft_seq_re, a) - torch.einsum("ts,bse->bte", dft_seq_im, b)
        return y

    def _B_ref(x, w_gate, w_up, w_down):
        g = _silu(x @ w_gate)
        u = x @ w_up
        return (g * u) @ w_down

    x = A_x
    x = x + _A_ref(_layernorm(x, axis=-1), A_dft_seq_re, A_dft_seq_im, A_dft_hid_re, A_dft_hid_im)
    x = x + _B_ref(_layernorm(x, axis=-1), B_w_gate, B_w_up, B_w_down)
    x = x + _A_ref(_layernorm(x, axis=-1), A_dft_seq_re, A_dft_seq_im, A_dft_hid_re, A_dft_hid_im)
    x = x + _B_ref(_layernorm(x, axis=-1), B_w_gate, B_w_up, B_w_down)
    return x
```

```python
KNAME = "interleave_layers__spectral_fnet__swiglu_ffn__prompt"

HEADER = """; Kernarg layout for this problem (96 bytes, ptrs only, base s[0:1]):
"""

ARG = dict(x=0, seq_re=8, seq_im=16, hid_re=24, hid_im=32, bx=40, wg=48, wu=56, wd=64,
           out=72, dbg=80, ws=88)
NBYTES = dict(x=2048 * 512 * 2, seq_re=2048 * 2048 * 2, seq_im=2048 * 2048 * 2,
              hid_re=512 * 512 * 2, hid_im=512 * 512 * 2, bx=2048 * 512 * 2,
              wg=512 * 1376 * 2, wu=512 * 1376 * 2, wd=1376 * 512 * 2,
              out=2048 * 512 * 2, dbg=256, ws=268435456)


def v(i, n=1):
    return f"v{i}" if n == 1 else f"v[{i}:{i + n - 1}]"


def a(i, n=1):
    return f"a{i}" if n == 1 else f"a[{i}:{i + n - 1}]"


def s(i, n=1):
    return f"s{i}" if n == 1 else f"s[{i}:{i + n - 1}]"


class Kernel:
    def __init__(self, name, vgprs=256, agprs=0, sgprs=102, wg_y=False):
        self.name = name
        self.lines = []
        self.vgprs = vgprs
        self.agprs = agprs
        self.sgprs = sgprs
        self.wg_y = wg_y
        self._lab = 0

    def __call__(self, text):
        for ln in text.strip("\n").split("\n"):
            self.lines.append("    " + ln.strip())

    def label(self, name):
        self.lines.append(f"{name}:")

    def newlabel(self, stem):
        self._lab += 1
        return f"L_{self.name[:-7]}_{stem}_{self._lab}"

    def srd(self, sreg, arg, off=0, size=None):
        self(f"s_load_dwordx2 {s(sreg, 2)}, s[0:1], {ARG[arg]}")
        return (sreg, arg, off, size)

    def srd_fin(self, h):
        sreg, arg, off, size = h
        if size is None:
            size = NBYTES[arg] - off
        if off:
            self(f"s_add_u32 {s(sreg)}, {s(sreg)}, {off}")
            self(f"s_addc_u32 {s(sreg + 1)}, {s(sreg + 1)}, 0")
        self(f"s_mov_b32 {s(sreg + 2)}, {size}")
        self(f"s_mov_b32 {s(sreg + 3)}, 0x00020000")

    def text(self):
        out = [f".globl {self.name}", ".p2align 8", f".type {self.name},@function", f"{self.name}:"]
        out += self.lines
        return "\n".join(out) + "\n"

    def desc(self):
        acc = (self.vgprs + 3) // 4 * 4
        nfv = acc + self.agprs if self.agprs else self.vgprs
        d = [f".amdhsa_kernel {self.name}",
             f"  .amdhsa_next_free_vgpr {nfv}",
             f"  .amdhsa_next_free_sgpr {self.sgprs}",
             f"  .amdhsa_accum_offset {acc}",
             "  .amdhsa_group_segment_fixed_size 0",
             "  .amdhsa_kernarg_size 96",
             "  .amdhsa_user_sgpr_count 2",
             "  .amdhsa_user_sgpr_kernarg_segment_ptr 1",
             "  .amdhsa_system_sgpr_workgroup_id_x 1"]
        if self.wg_y:
            d.append("  .amdhsa_system_sgpr_workgroup_id_y 1")
        d.append("  .amdhsa_float_denorm_mode_32 3")
        d.append(".end_amdhsa_kernel")
        return "\n".join(d) + "\n"


def build_file(kernels, launches, tail_text=""):
    out = HEADER
    for name, g, b, lds in launches:
        out += f"; @launch kernel={name} grid=({g[0]},{g[1]},{g[2]}) block=({b[0]},{b[1]},{b[2]}) lds={lds}\n"
    out += '.amdgcn_target "amdgcn-amd-amdhsa--gfx950"\n.text\n'
    for k in kernels:
        out += k.text()
    out += tail_text
    out += '.section .rodata,"a"\n'
    for k in kernels:
        out += ".p2align 6\n" + k.desc()
    return out
```

```python
import sys
from asmlib import *

MB = 1 << 20
WS = dict(xn=0, aT=2 * MB, bT=4 * MB, x1=6 * MB, h=8 * MB, x2=14 * MB, wgT=16 * MB, wuT=18 * MB, wdT=20 * MB)


def src(k, sreg, name, size):
    if name in WS:
        return k.srd(sreg, "ws", WS[name], size)
    return k.srd(sreg, name, 0, size)


def k_transpose(name, inp, out, R, C):
    k = Kernel(name, vgprs=16, sgprs=32)
    n = R * C
    h1 = src(k, 4, inp, n * 2)
    h2 = src(k, 8, out, n * 2)
    k("s_waitcnt lgkmcnt(0)")
    k.srd_fin(h1); k.srd_fin(h2)
    k(f"""
    s_cmp_ge_u32 s2, {n // 256}
    s_cbranch_scc1 L_{name}_end
    s_lshl_b32 s3, s2, 8
    v_add_u32 v1, s3, v0
    v_cvt_f32_u32 v2, v1
    v_add_f32 v2, 0.5, v2
    v_mul_f32 v2, {1.0 / R!r}, v2
    v_cvt_u32_f32 v2, v2
    s_mov_b32 s12, {R}
    v_mul_lo_u32 v3, v2, s12
    v_sub_u32 v3, v1, v3
    s_mov_b32 s12, {C}
    v_mul_lo_u32 v4, v3, s12
    v_add_u32 v4, v4, v2
    v_lshlrev_b32 v4, 1, v4
    v_lshlrev_b32 v5, 1, v1
    buffer_load_ushort v6, v4, s[4:7], 0 offen
    s_waitcnt vmcnt(0)
    buffer_store_short v6, v5, s[8:11], 0 offen
    """)
    k.label(f"L_{name}_end")
    k("s_endpgm")
    return k, (name, (n // 256, 1, 1), (256, 1, 1), 0)


def k_ln(name, inp):
    k = Kernel(name, vgprs=32, sgprs=32)
    h1 = src(k, 4, inp, 2 * MB)
    h2 = src(k, 8, "xn", 2 * MB)
    k("s_waitcnt lgkmcnt(0)")
    k.srd_fin(h1); k.srd_fin(h2)
    k(f"""
    s_cmp_ge_u32 s2, 512
    s_cbranch_scc1 L_{name}_end
    s_lshl_b32 s3, s2, 12
    v_lshlrev_b32 v1, 4, v0
    v_add_u32 v1, s3, v1
    buffer_load_dwordx4 v[4:7], v1, s[4:7], 0 offen
    s_waitcnt vmcnt(0)
    """)
    for i in range(4):
        k(f"v_lshlrev_b32 v{8 + 2 * i}, 16, v{4 + i}")
        k(f"v_and_b32 v{9 + 2 * i}, 0xffff0000, v{4 + i}")
    k("v_mov_b32 v16, 0")
    for i in range(8):
        k(f"v_add_f32 v16, v16, v{8 + i}")

    def allreduce(r):
        k("v_and_b32 v20, 63, v0")
        for m in (1, 2, 4, 8, 16, 32):
            k(f"""
            v_xor_b32 v21, {m}, v20
            v_lshlrev_b32 v21, 2, v21
            ds_bpermute_b32 v22, v21, v{r}
            s_waitcnt lgkmcnt(0)
            v_add_f32 v{r}, v{r}, v22
            """)
    allreduce(16)
    k(f"v_mul_f32 v16, {1.0 / 512!r}, v16")
    k("v_mov_b32 v17, 0")
    for i in range(8):
        k(f"v_sub_f32 v{8 + i}, v{8 + i}, v16")
        k(f"v_fmac_f32 v17, v{8 + i}, v{8 + i}")
    allreduce(17)
    k(f"""
    v_mul_f32 v17, {1.0 / 512!r}, v17
    v_add_f32 v17, 0x3727c5ac, v17
    v_rsq_f32 v17, v17
    s_nop 1
    """)
    for i in range(8):
        k(f"v_mul_f32 v{8 + i}, v{8 + i}, v17")
    for i in range(4):
        k(f"v_cvt_pk_bf16_f32 v{4 + i}, v{8 + 2 * i}, v{9 + 2 * i}")
    k("buffer_store_dwordx4 v[4:7], v1, s[8:11], 0 offen")
    k.label(f"L_{name}_end")
    k("s_endpgm")
    return k, (name, (512, 1, 1), (256, 1, 1), 0)


def k_gemm(name, M, N, K, A1, B1, A2, B2, mode, out, res=None):
    k = Kernel(name, vgprs=96, sgprs=48, wg_y=True)
    hs = [src(k, 4, A1, M * K * 2), src(k, 8, B1, N * K * 2), src(k, 20, out, M * N * 2)]
    two = A2 is not None
    if two:
        hs += [src(k, 12, A2, M * K * 2), src(k, 16, B2, N * K * 2)]
    if res:
        hs += [src(k, 24, res, M * N * 2)]
    k("s_waitcnt lgkmcnt(0)")
    for h in hs:
        k.srd_fin(h)
    gx = (N + 127) // 128
    k(f"""
    s_cmp_ge_u32 s2, {gx}
    s_cbranch_scc1 L_{name}_end
    v_lshrrev_b32 v1, 6, v0
    v_and_b32 v2, 31, v0
    v_bfe_u32 v3, v0, 5, 1
    s_lshl_b32 s28, s2, 7
    s_lshl_b32 s29, s3, 5
    v_lshlrev_b32 v4, 5, v1
    v_add_u32 v4, s28, v4
    v_add_u32 v5, v4, v2
    v_add_u32 v6, s29, v2
    s_mov_b32 s30, {K * 2}
    v_mul_lo_u32 v7, v5, s30
    v_mul_lo_u32 v8, v6, s30
    v_lshlrev_b32 v9, 4, v3
    v_add_u32 v7, v7, v9
    v_add_u32 v8, v8, v9
    """)
    for i in range(32):
        k(f"v_mov_b32 v{32 + i}, 0")
    k(f"s_mov_b32 s31, 0")
    k.label(f"L_{name}_loop")
    k("buffer_load_dwordx4 v[12:15], v7, s[8:11], s31 offen")
    k("buffer_load_dwordx4 v[16:19], v8, s[4:7], s31 offen")
    if two:
        k("buffer_load_dwordx4 v[20:23], v7, s[16:19], s31 offen")
        k("buffer_load_dwordx4 v[24:27], v8, s[12:15], s31 offen")
    k("s_waitcnt vmcnt(0)")
    k("v_mfma_f32_32x32x16_bf16 v[32:47], v[12:15], v[16:19], v[32:47]")
    if two:
        k("v_mfma_f32_32x32x16_bf16 v[48:63], v[20:23], v[24:27], v[48:63]")
    k(f"""
    s_add_u32 s31, s31, 32
    s_cmp_lt_u32 s31, {K * 2}
    s_cbranch_scc1 L_{name}_loop
    s_nop 15
    s_nop 3
    s_mov_b32 s30, {N * 2}
    v_mul_lo_u32 v10, v6, s30
    v_lshlrev_b32 v11, 2, v3
    v_add_u32 v11, v11, v4
    v_lshlrev_b32 v28, 1, v11
    v_add_u32 v10, v10, v28
    s_mov_b32 s30, {N}
    v_cmp_gt_u32 vcc, s30, v4
    s_and_saveexec_b64 s[32:33], vcc
    s_cbranch_execz L_{name}_end
    """)
    if res:
        for j in range(4):
            k(f"buffer_load_dwordx2 v[{64 + 2 * j}:{65 + 2 * j}], v10, s[24:27], 0 offen offset:{16 * j}")
        k("s_waitcnt vmcnt(0)")
    for r in range(16):
        d = 32 + r
        if mode == "sub":
            k(f"v_sub_f32 v{d}, v{d}, v{d + 16}")
        if mode == "glu":
            k(f"""
            v_mul_f32 v72, 0xbfb8aa3b, v{d}
            v_exp_f32 v72, v72
            s_nop 0
            v_add_f32 v72, 1.0, v72
            v_rcp_f32 v72, v72
            s_nop 0
            v_mul_f32 v{d}, v{d}, v72
            v_mul_f32 v{d}, v{d}, v{d + 16}
            """)
        if res:
            rr = 64 + r // 2
            if r % 2 == 0:
                k(f"v_lshlrev_b32 v72, 16, v{rr}")
            else:
                k(f"v_and_b32 v72, 0xffff0000, v{rr}")
            k(f"v_add_f32 v{d}, v{d}, v72")
    for j in range(4):
        k(f"v_cvt_pk_bf16_f32 v{74 + 2 * j}, v{32 + 4 * j}, v{33 + 4 * j}")
        k(f"v_cvt_pk_bf16_f32 v{75 + 2 * j}, v{34 + 4 * j}, v{35 + 4 * j}")
        k(f"buffer_store_dwordx2 v[{74 + 2 * j}:{75 + 2 * j}], v10, s[20:23], 0 offen offset:{16 * j}")
    k.label(f"L_{name}_end")
    k("s_endpgm")
    return k, (name, (gx, M // 32, 1), (256, 1, 1), 0)


def k_empty(name, grid):
    k = Kernel(name, vgprs=8, sgprs=16)
    k("s_endpgm")
    return k, (name, (grid, 1, 1), (256, 1, 1), 0)


def main(n_front=0, n_back=0):
    ks, ls = [], []

    def add(kl):
        if kl[0].name not in [x.name for x in ks]:
            ks.append(kl[0])
        ls.append(kl[1])
    for i in range(n_front):
        add(k_empty("nop_kernel", 256))
    add(k_transpose("tg_kernel", "wg", "wgT", 512, 1376))
    add(k_transpose("tu_kernel", "wu", "wuT", 512, 1376))
    add(k_transpose("td_kernel", "wd", "wdT", 1376, 512))
    for layer, (xin, xout) in enumerate((("x", "x2"), ("x2", "out"))):
        add(k_ln(f"lna{layer}_kernel", xin))
        add(k_gemm("hre_kernel", 512, 2048, 512, "hid_re", "xn", None, None, "plain", "aT"))
        add(k_gemm("him_kernel", 512, 2048, 512, "hid_im", "xn", None, None, "plain", "bT"))
        add(k_gemm(f"seq{layer}_kernel", 2048, 512, 2048, "seq_re", "aT", "seq_im", "bT", "sub", "x1", res=xin))
        add(k_ln("lnb_kernel", "x1"))
        add(k_gemm("glu_kernel", 2048, 1376, 512, "xn", "wgT", "xn", "wuT", "glu", "h"))
        add(k_gemm(f"down{layer}_kernel", 2048, 512, 1376, "h", "wdT", None, None, "plain", xout, res="x1"))
    for i in range(n_back):
        add(k_empty("nop_kernel", 256))
    return build_file(ks, ls)


if __name__ == "__main__":
    nf = int(sys.argv[2]) if len(sys.argv) > 2 else 0
    nb = int(sys.argv[3]) if len(sys.argv) > 3 else 0
    open(sys.argv[1], "w").write(main(nf, nb))
```

```python
import re
from asmlib import Kernel

TRANS = ("v_exp_f32", "v_log_f32", "v_rcp_f32", "v_rsq_f32", "v_sqrt_f32", "v_sin_f32", "v_cos_f32")
NODST_S = ("s_cmp", "s_cbranch", "s_waitcnt", "s_barrier", "s_nop", "s_setprio", "s_sleep", "s_endpgm",
           "s_branch", "s_bitcmp")
_REG = re.compile(r"^(-|abs\()?([vas])(\d+)\)?$")
_RNG = re.compile(r"^(-)?([vas])\[(\d+):(\d+)\]$")


def regs_of(op):
    op = op.strip()
    m = _RNG.match(op)
    if m:
        return {(m.group(2), i) for i in range(int(m.group(3)), int(m.group(4)) + 1)}
    m = _REG.match(op)
    if m:
        return {(m.group(2), int(m.group(3)))}
    if op in ("vcc", "vcc_lo", "vcc_hi"):
        return {("vcc", 0)}
    if op in ("exec", "exec_lo", "exec_hi"):
        return {("exec", 0)}
    if op == "m0":
        return {("m0", 0)}
    return set()


class Ins:
    def __init__(self, text):
        self.text = text
        body = text.split(";")[0].strip()
        parts = body.split(None, 1)
        self.mn = parts[0]
        rest = parts[1] if len(parts) > 1 else ""
        ops = [o.strip() for o in rest.split(",")] if rest else []
        self.mods = ""
        if ops:
            last = ops[-1].split(None, 1)
            ops[-1] = last[0]
            self.mods = last[1] if len(last) > 1 else ""
        self.ops = ops
        mn = self.mn
        R = [regs_of(o) for o in ops]
        U = lambda xs: set().union(*xs) if xs else set()
        self.rd, self.wr = set(), set()
        self.kind = "salu"
        self.srcc = set()
        self.ab = set()
        self.states = 1
        self.wide_store = set()
        if mn == "s_nop":
            self.states = int(ops[0], 0) + 1
        if mn.startswith("v_mfma"):
            self.kind = "mfma"
            self.wr = R[0]; self.ab = R[1] | R[2]; self.srcc = R[3]; self.rd = self.ab | self.srcc
            self.passes = 8 if "32x32" in mn else 4
        elif mn.startswith("v_"):
            self.kind = "valu"
            if mn.startswith(("v_add_co", "v_sub_co", "v_addc_co", "v_subb_co")):
                self.wr = R[0] | R[1]; self.rd = U(R[2:])
            elif mn.startswith(("v_permlane32_swap", "v_permlane16_swap", "v_swap")):
                self.wr = R[0] | R[1]; self.rd = R[0] | R[1]
            else:
                self.wr = R[0]; self.rd = U(R[1:])
                if mn.startswith(("v_fmac", "v_dot2c", "v_writelane", "v_pk_fmac")):
                    self.rd |= R[0]
                if mn.startswith("v_cmpx"):
                    self.wr |= {("exec", 0)}
        elif mn.startswith("ds_"):
            self.kind = "ds"
            if mn.startswith(("ds_read", "ds_bpermute", "ds_swizzle", "ds_permute")):
                self.wr = R[0]; self.rd = U(R[1:])
            else:
                self.rd = U(R)
        elif mn.startswith(("buffer_", "global_")):
            self.kind = "vmem"
            lds = "lds" in self.mods.split() or "_lds_" in mn
            if mn in ("buffer_wbl2", "buffer_inv"):
                pass
            elif lds:
                self.rd = U(R) | {("m0", 0)}
                self.dma = True
            elif "_load_" in mn:
                self.wr = R[0]; self.rd = U(R[1:])
            elif "atomic" in mn:
                self.rd = U(R)
                if "sc0" in self.mods.split():
                    self.wr = R[0]
            else:
                self.rd = U(R)
                d = R[0] if mn.startswith("buffer_") else R[1]
                if len(d) >= 3:
                    self.wide_store = d
        elif mn.startswith(("s_load", "s_memtime", "s_memrealtime")):
            self.kind = "smem"
            self.wr = R[0]; self.rd = U(R[1:])
        else:
            if mn.startswith(NODST_S):
                self.rd = U(R)
                if "vcc" in mn:
                    self.rd |= {("vcc", 0)}
            else:
                self.wr = R[0]; self.rd = U(R[1:])
                if "saveexec" in mn:
                    self.wr |= {("exec", 0)}
        self.trans = mn.replace("_e32", "").replace("_e64", "") in TRANS
        self.dot = mn.startswith("v_dot")
        self.dpp = "_dpp" in mn or "row_" in self.mods or "quad_perm" in self.mods
        self.lane = mn.startswith(("v_readlane", "v_readfirstlane"))
        self.perm = mn.startswith("v_permlane")


def vec(rs):
    return {r for r in rs if r[0] in "va"}


def sca(rs):
    return {r for r in rs if r[0] in ("s", "vcc")}


def need_states(p, c):
    n = 0
    if p.kind == "mfma":
        big = {8: 12, 4: 8}[p.passes]
        if c.kind == "mfma":
            if p.wr & c.ab:
                n = max(n, big)
            if p.wr & c.srcc and not (p.wr == c.srcc and p.passes == c.passes):
                n = max(n, big - 2)
            if p.wr & c.wr and not p.wr & c.srcc:
                n = max(n, big)
        elif c.kind in ("valu", "ds", "vmem") and p.wr & (c.rd | c.wr):
            n = max(n, big)
        if c.kind == "valu" and p.srcc & c.wr:
            n = max(n, {8: 7, 4: 3}[p.passes])
    if p.kind == "valu":
        pv = vec(p.wr)
        if c.kind == "mfma" and pv & c.rd:
            n = max(n, 3 if p.dot else 2)
        if c.kind == "mfma" and ("exec", 0) in p.wr:
            n = max(n, 4)
        if c.kind == "valu":
            if p.trans and not c.trans and pv & c.rd:
                n = max(n, 1)
            if (c.perm or c.dpp) and pv & c.rd:
                n = max(n, 2)
            if c.lane and pv & c.rd:
                n = max(n, 1)
            if sca(p.wr) & c.rd:
                n = max(n, 4 if c.mn.startswith(("v_readlane", "v_writelane")) else 2)
            if p.dot and pv & (c.rd | c.wr):
                same_acc = c.mn == p.mn and not (pv & set().union(*[regs_of(o) for o in c.ops[1:3]]))
                if not same_acc:
                    n = max(n, 3)
        if c.kind in ("vmem", "ds") and p.dot and pv & c.rd:
            n = max(n, 3)
        if c.kind == "vmem" and sca(p.wr) & c.rd:
            n = max(n, 5)
        if c.kind in ("salu", "smem") and sca(p.wr) & c.rd:
            n = max(n, 1)
    if p.kind == "salu" and ("m0", 0) in p.wr and ("m0", 0) in c.rd and c.kind == "vmem":
        n = max(n, 1)
    if p.wide_store and p.wide_store & c.wr:
        n = max(n, 2)
    return n


class Em(Kernel):
    def __init__(self, *a, **kw):
        super().__init__(*a, **kw)
        self.hist = []
        self.vq = []
        self.lq = []
        self.sm = set()
        self.pend = {}
        self.nops = 0
        self.tag = None
        self.dummy = set()

    def raw(self, text):
        self.lines.append("    " + text)

    def _age(self, n):
        self.hist = [[i, a + n] for i, a in self.hist if a + n < 24]

    def _emit(self, ins):
        need = 0
        for p, age in self.hist:
            need = max(need, need_states(p, ins) - age)
        if need > 0:
            self.nops += need
            while need > 0:
                c = min(need, 16)
                self.raw(f"s_nop {c - 1}")
                self._age(c)
                need -= c
        self.raw(ins.text)
        self._age(ins.states)
        self.hist.append([ins, 0])

    def _wait(self, vm=None, lg=None):
        parts = []
        if vm is not None and vm < len(self.vq):
            assert vm <= 63
            parts.append(f"vmcnt({vm})")
            self.vq = self.vq[len(self.vq) - vm:] if vm else []
        if lg is not None and (lg < len(self.lq) or (lg == 0 and self.sm)):
            if self.sm:
                lg = 0
            lg = min(lg, 15)
            parts.append(f"lgkmcnt({lg})")
            self.lq = self.lq[len(self.lq) - lg:] if lg else []
            if lg == 0:
                self.sm = set()
        if parts:
            self._emit(Ins("s_waitcnt " + " ".join(parts)))

    def wait_vm(self, n=0):
        self._wait(vm=n)

    def wait_lg(self, n=0):
        self._wait(lg=n)

    def wait_tag(self, tag):
        idx = [i for i, (d, t) in enumerate(self.vq) if t == tag]
        if idx:
            self._wait(vm=len(self.vq) - idx[-1] - 1)

    def ins(self, text):
        c = Ins(text)
        c.wr = c.wr - self.dummy
        use = c.rd | c.wr
        vm = lg = None
        if c.mn == "s_waitcnt":
            m = re.search(r"vmcnt\((\d+)\)", text)
            if m:
                n = int(m.group(1)); self.vq = self.vq[len(self.vq) - n:] if n and n < len(self.vq) else ([] if n == 0 else self.vq)
            m = re.search(r"lgkmcnt\((\d+)\)", text)
            if m:
                n = int(m.group(1))
                assert n == 0
                self.lq = []; self.sm = set()
            self._emit(c)
            return
        for i, (d, t) in enumerate(self.vq):
            if d & use:
                vm = len(self.vq) - i - 1
        for i, (d, t) in enumerate(self.lq):
            if d & use:
                lg = len(self.lq) - i - 1
        if self.sm & use:
            lg = 0
        self._wait(vm, lg)
        if c.kind == "vmem" and len(self.vq) >= 63:
            self._wait(vm=62)
        self._emit(c)
        if c.kind == "vmem":
            self.vq.append((set(c.wr), self.tag))
        elif c.kind == "ds":
            self.lq.append((set(c.wr), self.tag))
        elif c.kind == "smem":
            self.sm |= c.wr
        if c.mn.startswith(("s_cbranch", "s_branch")):
            self.pend.setdefault(c.ops[0], []).append([[i, a] for i, a in self.hist])

    def __call__(self, text):
        for ln in text.strip("\n").split("\n"):
            ln = ln.strip()
            if not ln:
                continue
            if ln.endswith(":"):
                self.label(ln[:-1])
            else:
                self.ins(ln)

    def label(self, name):
        self.lines.append(f"{name}:")
        for h in self.pend.pop(name, []):
            self.hist += h

    def snapshot(self):
        return (list(self.vq), list(self.lq), set(self.sm))

    def restore(self, snap):
        assert not self.vq or self.vq == snap[0], "skipped section leaves vector-memory ops in flight"
        assert not self.lq or self.lq == snap[1], "skipped section leaves LDS ops in flight"
        self.vq, self.lq, self.sm = list(snap[0]), list(snap[1]), set(snap[2]) | self.sm
```

```python
import sys
from asmlib import *
from emit import Em

NAME = KNAME + "_kernel"
NONCE, XF, LF, ZF = 0, 0x1000, 0x2000, 0x10000
XA, XB, ST, H, Z, PROF = 0x100000, 0x300000, 0x500000, 0x600000, 0xC00000, 0x1000000
WS_USED = 0x1100000
OOB = 0x40000000
SB = 98304
LDS_BYTES = 163840
SPIN = 1 << 15

S_X, S_HR, S_HI, S_WD, S_OUT, S_WS = 4, 8, 12, 16, 20, 24
S_WG, S_WU, S_N = 28, 30, 32
sW, sC, sSig, sI, sJ, sRho, sSlow, sXcc, sT0, sOnes, sTau = 34, 35, 36, 37, 38, 39, 40, 41, 42, 43, 44
S_B0, S_B1 = 48, 52
sA = list(range(56, 72))
S_EX, sCnt, sTo = 72, 74, 75
S_PROF = 76
vL16, vLam, vH, vDum, vProf, vTrY, vTrY2, vL = 255, 254, 253, 252, 251, 250, 249, 248
A_WD, A_F1, A_CORR, A_X1 = 0, 176, 208, 224


class Gen:
    def __init__(self, stop=None, prof=False, force_slow=False):
        self.k = Em(NAME, vgprs=256, agprs=256, sgprs=96)
        self.k.dummy = {("v", vDum)}
        self.stop = stop
        self.prof = prof
        self.force_slow = force_slow
        self.nstamp = 0

    def stamp(self):
        if not self.prof:
            return
        k = self.k
        snap_l = list(k.lq)
        k(f"s_memtime s[{S_PROF}:{S_PROF + 1}]")
        k.wait_lg(0)
        k(f"v_writelane_b32 v{vProf}, s{S_PROF}, {self.nstamp}")
        self.nstamp += 1

    def done(self, name):
        if self.stop == name:
            self.k.wait_vm(0)
            self.k("s_branch L_fin")
            return True
        return False

    def poll(self, vaddr, tag_off, vt=2):
        k = self.k
        lab = k.newlabel("poll")
        k(f"s_add_u32 s{sA[0]}, s{S_N}, {tag_off}")
        k(f"s_mov_b32 s{sCnt}, 0")
        k.wait_vm(0)
        k.label(lab)
        k(f"buffer_load_dwordx2 v[{vt}:{vt + 1}], v{vaddr}, s[{S_WS}:{S_WS + 3}], 0 offen sc1")
        k(f"""
        v_subrev_u32 v{vt + 2}, s{sA[0]}, v{vt}
        v_xor_b32 v{vt + 3}, s{S_N + 1}, v{vt + 1}
        v_lshrrev_b32 v{vt + 2}, 3, v{vt + 2}
        v_or_b32 v{vt + 2}, v{vt + 2}, v{vt + 3}
        v_cmp_ne_u32 vcc, 0, v{vt + 2}
        s_cbranch_vccz {lab}_ok
        s_add_u32 s{sCnt}, s{sCnt}, 1
        s_cmp_lt_u32 s{sCnt}, {SPIN}
        s_cbranch_scc1 {lab}
        s_add_u32 s{sTo}, s{sTo}, 1
        {lab}_ok:
        """)

    def flag_store(self, off_sreg, tag_off, sc):
        k = self.k
        k(f"""
        s_add_u32 s{sA[0]}, s{S_N}, {tag_off}
        v_mov_b32 v2, s{sA[0]}
        v_mov_b32 v3, s{S_N + 1}
        v_mov_b32 v4, s{off_sreg}
        s_mov_b64 s[{S_EX}:{S_EX + 1}], exec
        s_mov_b64 exec, 1
        buffer_store_dwordx2 v[2:3], v4, s[{S_WS}:{S_WS + 3}], 0 offen {sc}
        s_mov_b64 exec, s[{S_EX}:{S_EX + 1}]
        """)

    def local_sync(self, p, members, between=None):
        k = self.k
        k.wait_tag("pub")
        k("s_barrier")
        lab = k.newlabel("ls")
        snap = k.snapshot()
        k(f"s_cmp_lg_u32 s{sW}, 0")
        k(f"s_cbranch_scc1 {lab}_join")
        k(f"""
        s_lshl_b32 s{sA[1]}, s{sC}, 8
        s_lshl_b32 s{sA[2]}, s{sSig}, 3
        s_add_u32 s{sA[1]}, s{sA[1]}, {LF}
        s_add_u32 s{sA[2]}, s{sA[2]}, s{sA[1]}
        s_cmp_eq_u32 s{sSlow}, 0
        s_cbranch_scc1 {lab}_fast
        buffer_wbl2 sc1
        """)
        k.wait_vm(0)
        self.flag_store(sA[2], p, "sc1")
        k(f"s_branch {lab}_polled")
        k.label(f"{lab}_fast")
        self.flag_store(sA[2], p, "")
        k.label(f"{lab}_polled")
        if members == "all":
            k(f"v_lshlrev_b32 v6, 3, v{vLam}")
        else:
            k(f"""
            v_and_b32 v6, 7, v{vLam}
            s_lshl_b32 s{sA[3]}, s{sI}, 3
            v_add_lshl_u32 v6, v6, s{sA[3]}, 3
            """)
        k(f"v_add_u32 v6, s{sA[1]}, v6")
        self.poll(6, p)
        k(f"""
        s_cmp_eq_u32 s{sSlow}, 0
        s_cbranch_scc1 {lab}_join
        buffer_inv sc1
        """)
        k.wait_vm(0)
        k.label(f"{lab}_join")
        k.restore(snap)
        k("s_barrier")

    def prologue(self):
        k = self.k
        k(f"""
        s_load_dwordx2 s[{S_X}:{S_X + 1}], s[0:1], 0
        s_load_dwordx2 s[{S_HR}:{S_HR + 1}], s[0:1], 24
        s_load_dwordx2 s[{S_HI}:{S_HI + 1}], s[0:1], 32
        s_load_dwordx4 s[{S_WG}:{S_WG + 3}], s[0:1], 48
        s_load_dwordx2 s[{S_WD}:{S_WD + 1}], s[0:1], 64
        s_load_dwordx2 s[{S_OUT}:{S_OUT + 1}], s[0:1], 72
        s_load_dwordx2 s[{S_WS}:{S_WS + 1}], s[0:1], 88
        s_cmp_ge_u32 s2, 256
        s_cbranch_scc1 L_end
        s_getpc_b64 s[{sA[0]}:{sA[1]}]
        v_lshlrev_b32 v1, 7, v0
        global_load_dword v{vDum}, v1, s[{sA[0]}:{sA[1]}]
        v_add_u32 v1, 0x8000, v1
        global_load_dword v{vDum}, v1, s[{sA[0]}:{sA[1]}]
        v_and_b32 v{vL}, 63, v0
        v_lshrrev_b32 v1, 6, v0
        v_and_b32 v{vLam}, 31, v0
        v_bfe_u32 v{vH}, v0, 5, 1
        v_readfirstlane_b32 s{sW}, v1
        v_lshlrev_b32 v{vL16}, 4, v{vL}
        v_mov_b32 v{vProf}, 0
        s_and_b32 s{sC}, s2, 7
        s_lshr_b32 s{sSig}, s2, 3
        s_lshr_b32 s{sI}, s{sSig}, 3
        s_and_b32 s{sJ}, s{sSig}, 7
        s_lshl_b32 s{sA[2]}, s{sC}, 1
        s_sub_u32 s{sA[3]}, 32, s{sA[2]}
        s_cmp_eq_u32 s{sC}, 0
        s_cselect_b32 s{sA[3]}, 16, s{sA[3]}
        s_add_u32 s{sA[4]}, s{sA[2]}, 1
        s_sub_u32 s{sA[5]}, 31, s{sA[2]}
        s_bitcmp1_b32 s{sI}, 0
        s_cselect_b32 s{sA[2]}, s{sA[3]}, s{sA[2]}
        s_cselect_b32 s{sA[4]}, s{sA[5]}, s{sA[4]}
        s_bitcmp1_b32 s{sI}, 1
        s_cselect_b32 s{sRho}, s{sA[4]}, s{sA[2]}
        s_mul_i32 s{sT0}, s{sSig}, 3
        s_min_u32 s{sT0}, s{sT0}, 83
        s_lshl_b32 s{sTau}, s{sC}, 3
        s_lshl_b32 s{sA[2]}, s{sI}, 1
        s_add_u32 s{sTau}, s{sTau}, s{sA[2]}
        s_mov_b32 s{sOnes}, 0x3f803f80
        s_mov_b32 s{sTo}, 0
        s_mov_b32 s45, 0x3b000000
        s_mov_b32 s{sSlow}, 0
        s_getreg_b32 s{sXcc}, hwreg(HW_REG_XCC_ID)
        s_and_b32 s{sXcc}, s{sXcc}, 7
        """)
        for r, n in ((S_X, NBYTES["x"]), (S_HR, NBYTES["hid_re"]), (S_HI, NBYTES["hid_im"]), (S_WD, NBYTES["wd"]),
                     (S_OUT, NBYTES["out"]), (S_WS, WS_USED)):
            k(f"s_mov_b32 s{r + 2}, {n}")
            k(f"s_mov_b32 s{r + 3}, 0x00020000")
        k.wait_lg(0)
        k(f"s_load_dwordx2 s[{S_N}:{S_N + 1}], s[{S_WS}:{S_WS + 1}], {NONCE}")
        k(f"""
        s_bitcmp1_b32 s{sW}, 0
        s_cselect_b64 s[{S_B0}:{S_B0 + 1}], s[{S_HI}:{S_HI + 1}], s[{S_HR}:{S_HR + 1}]
        s_cselect_b64 s[{S_B1}:{S_B1 + 1}], s[{S_HR}:{S_HR + 1}], s[{S_HI}:{S_HI + 1}]
        s_mov_b32 s{S_B0 + 2}, {NBYTES["hid_re"]}
        s_mov_b32 s{S_B0 + 3}, 0x00020000
        s_mov_b32 s{S_B1 + 2}, {NBYTES["hid_re"]}
        s_mov_b32 s{S_B1 + 3}, 0x00020000
        """)
        self.stamp()

    def publish_xcc(self):
        k = self.k
        lab = k.newlabel("xf")
        k(f"""
        s_lshl_b32 s{sA[1]}, s{sC}, 8
        s_lshl_b32 s{sA[2]}, s{sSig}, 3
        s_add_u32 s{sA[1]}, s{sA[1]}, s{sA[2]}
        s_add_u32 s{sA[1]}, s{sA[1]}, {XF}
        s_add_u32 s{sA[0]}, s{S_N}, s{sXcc}
        s_add_u32 s{sA[0]}, s{sA[0]}, 8
        v_mov_b32 v2, s{sA[0]}
        v_mov_b32 v3, s{S_N + 1}
        v_mov_b32 v4, s{sA[1]}
        s_cmp_eq_u32 s{sW}, 0
        s_cselect_b32 s{sA[3]}, 0, {OOB}
        s_mov_b64 s[{S_EX}:{S_EX + 1}], exec
        s_mov_b64 exec, 1
        buffer_store_dwordx2 v[2:3], v4, s[{S_WS}:{S_WS + 3}], s{sA[3]} offen sc1
        s_mov_b64 exec, s[{S_EX}:{S_EX + 1}]
        """)

    W_A, W_B, W_ACC = 64, 128, 0

    def w_load_b(self):
        k = self.k
        k(f"""
        s_lshl_b32 s{sA[0]}, s{sJ}, 5
        v_add_u32 v200, s{sA[0]}, v{vLam}
        v_cmp_eq_u32 vcc, 0, v200
        v_mov_b32 v202, 256
        v_lshlrev_b32 v203, 4, v{vH}
        s_lshl_b32 s{sA[1]}, s{sW}, 8
        v_cndmask_b32 v201, v200, v202, vcc
        v_add_u32 v203, s{sA[1]}, v203
        v_lshl_add_u32 v200, v200, 10, v203
        v_lshl_add_u32 v201, v201, 10, v203
        s_bitcmp1_b32 s{sW}, 0
        s_cselect_b64 vcc, -1, 0
        v_cndmask_b32 v202, v201, v200, vcc
        v_cndmask_b32 v203, v200, v201, vcc
        """)
        for kk in range(8):
            for pn in range(2):
                r = self.W_B + 32 * pn + 4 * kk
                srd = (S_B0, S_B1)[pn]
                k(f"buffer_load_dwordx4 v[{r}:{r + 3}], v{202 + pn}, s[{srd}:{srd + 3}], 0 offen offset:{32 * kk}")

    def w_load_a(self, layer):
        k = self.k
        if layer == 0:
            k(f"""
            v_lshlrev_b32 v204, 16, v{vLam}
            v_lshl_add_u32 v204, v{vH}, 4, v204
            s_lshl_b32 s{sA[0]}, s{sRho}, 10
            s_lshl_b32 s{sA[1]}, s{sW}, 8
            s_add_u32 s{sA[0]}, s{sA[0]}, s{sA[1]}
            s_lshr_b32 s{sA[2]}, s{sW}, 1
            s_lshl_b32 s{sA[2]}, s{sA[2]}, 15
            s_add_u32 s{sA[3]}, s{sA[0]}, s{sA[2]}
            s_xor_b32 s{sA[2]}, s{sA[2]}, 0x8000
            s_add_u32 s{sA[4]}, s{sA[0]}, s{sA[2]}
            """)
            for kk in range(8):
                for pu in range(2):
                    r = self.W_A + 32 * pu + 4 * kk
                    k(f"buffer_load_dwordx4 v[{r}:{r + 3}], v204, s[{S_X}:{S_X + 3}], s{sA[3 + pu]} offen offset:{32 * kk}")
        else:
            k(f"""
            s_lshl_b32 s{sA[0]}, s{sTau}, 15
            s_lshl_b32 s{sA[1]}, s{sW}, 13
            s_add_u32 s{sA[0]}, s{sA[0]}, s{sA[1]}
            s_add_u32 s{sA[0]}, s{sA[0]}, {XB}
            s_lshr_b32 s{sA[2]}, s{sW}, 1
            s_lshl_b32 s{sA[2]}, s{sA[2]}, 15
            s_add_u32 s{sA[3]}, s{sA[0]}, s{sA[2]}
            s_xor_b32 s{sA[2]}, s{sA[2]}, 0x8000
            s_add_u32 s{sA[4]}, s{sA[0]}, s{sA[2]}
            s_add_u32 s{sA[5]}, s{sA[3]}, 4096
            s_add_u32 s{sA[6]}, s{sA[4]}, 4096
            """)
            for kk in range(8):
                for pu in range(2):
                    r = self.W_A + 32 * pu + 4 * kk
                    so = sA[3 + pu + 2 * (kk // 4)]
                    k(f"buffer_load_dwordx4 v[{r}:{r + 3}], v{vL16}, s[{S_WS}:{S_WS + 3}], s{so} offen offset:{1024 * (kk % 4)} sc1")

    def gen_f1(self):
        k = self.k
        k(f"""
        v_lshrrev_b32 v2, 1, v{vLam}
        s_lshl_b32 s{sA[0]}, s{sW}, 4
        v_add_u32 v2, s{sA[0]}, v2
        v_cvt_f32_u32 v2, v2
        v_mul_f32 v2, 0x3c800000, v2
        v_and_b32 v3, 1, v{vLam}
        v_cvt_f32_u32 v3, v3
        v_mul_f32 v3, 0x3e800000, v3
        v_cvt_f32_u32 v4, v{vH}
        v_mul_f32 v4, 0x41000000, v4
        v_fma_f32 v3, v2, v4, v3
        v_add_f32 v4, 0xbe800000, v3
        """)
        for u in range(2):
            for n in range(2):
                for ks in range(2):
                    base = A_F1 + 4 * (4 * u + 2 * n + ks)
                    for q in range(8):
                        s1 = 2 * (16 * ks + 8 * (q // 4) + q % 4) + u
                        k(f"v_fmamk_f32 v{8 + q}, v2, {f32(float(s1))}, v{3 + n}")
                    for q in range(8):
                        k(f"v_cos_f32 v{8 + q}, v{8 + q}")
                    for d in range(4):
                        k(f"v_cvt_pk_bf16_f32 v{16 + d}, v{8 + 2 * d}, v{9 + 2 * d}")
                    for d in range(4):
                        k(f"v_accvgpr_write_b32 a{base + d}, v{16 + d}")

    def reduce_send(self, acc):
        k = self.k
        for p in (1, 2, 3):
            k(f"""
            s_xor_b32 s{sA[0]}, s{sW}, {p}
            s_mul_i32 s{sA[0]}, s{sA[0]}, 12288
            s_add_u32 s{sA[0]}, s{sA[0]}, {SB + (p - 1) * 4096}
            v_add_u32 v{195 + p}, s{sA[0]}, v{vL16}
            """)
        for p in (1, 2, 3):
            for q in range(4):
                r = acc + 16 * p + 4 * q
                k(f"ds_write_b128 v{195 + p}, v[{r}:{r + 3}] offset:{1024 * q}")

    def reduce_recv(self, acc):
        k = self.k
        k(f"""
        s_mul_i32 s{sA[0]}, s{sW}, 12288
        s_add_u32 s{sA[0]}, s{sA[0]}, {SB}
        v_add_u32 v196, s{sA[0]}, v{vL16}
        """)
        for p in range(3):
            for q in range(4):
                r = acc + 16 * (p + 1) + 4 * q
                k(f"ds_read_b128 v[{r}:{r + 3}], v196 offset:{4096 * p + 1024 * q}")

    def reduce_add(self, acc):
        k = self.k
        for p in range(3):
            for r in range(16):
                k(f"v_add_f32 v{acc + r}, v{acc + r}, v{acc + 16 * (p + 1) + r}")

    def w_compute(self, layer):
        k = self.k
        A, B, ACC = self.W_A, self.W_B, self.W_ACC
        STW, RT, PK = SB + 49152, SB + 49152 + 4096, SB + 49152 + 4096 + 512
        for r in range(192, 196):
            k(f"v_mov_b32 v{r}, 0")
        for kk in range(8):
            for pu in range(2):
                for pn in range(2):
                    d = ACC + 16 * (2 * pu + pn)
                    c = f"v[{d}:{d + 15}]" if kk else "0"
                    ra, rb = A + 32 * pu + 4 * kk, B + 32 * pn + 4 * kk
                    k(f"v_mfma_f32_32x32x16_bf16 v[{d}:{d + 15}], v[{ra}:{ra + 3}], v[{rb}:{rb + 3}], {c}")
                    for q in (2 * pn, 2 * pn + 1):
                        k(f"v_dot2c_f32_bf16 v{192 + 2 * pu}, s{sOnes}, v{ra + q}")
                        k(f"v_dot2c_f32_bf16 v{193 + 2 * pu}, v{ra + q}, v{ra + q}")
        self.stamp()
        k(f"""
        s_lshr_b32 s{sA[1]}, s{sW}, 1
        s_lshl_b32 s{sA[1]}, s{sA[1]}, 11
        s_lshl_b32 s{sA[2]}, s{sW}, 4
        s_add_u32 s{sA[2]}, s{sA[2]}, {STW}
        v_lshlrev_b32 v200, 6, v{vLam}
        v_lshl_add_u32 v201, v{vH}, 3, v200
        v_add_u32 v201, s{sA[2]}, v201
        v_add_u32 v202, s{sA[1]}, v201
        s_xor_b32 s{sA[3]}, s{sA[1]}, 2048
        v_add_u32 v203, s{sA[3]}, v201
        s_add_u32 s{sA[1]}, s{sA[1]}, {STW}
        v_add_u32 v200, s{sA[1]}, v200
        ds_write_b64 v202, v[192:193]
        ds_write_b64 v203, v[194:195]
        """)
        self.reduce_send(ACC)
        k.wait_lg(0)
        k("s_barrier")
        for q in range(4):
            k(f"ds_read_b128 v[{64 + 4 * q}:{67 + 4 * q}], v200 offset:{16 * q}")
        self.reduce_recv(ACC)
        for q in range(1, 8):
            k(f"v_add_f32 v64, v64, v{64 + 2 * q}")
            k(f"v_add_f32 v65, v65, v{65 + 2 * q}")
        k(f"""
        v_mul_f32 v64, 0x3b000000, v64
        v_mul_f32 v66, v64, v64
        v_fma_f32 v65, v65, {POW2M9}, -v66
        v_max_f32 v65, 0, v65
        v_add_f32 v65, 0x3727c5ac, v65
        v_rsq_f32 v65, v65
        s_lshl_b32 s{sA[1]}, s{sW}, 7
        s_add_u32 s{sA[1]}, s{sA[1]}, {RT}
        v_lshl_add_u32 v66, v{vLam}, 2, s{sA[1]}
        v_lshl_add_u32 v67, v{vH}, 4, s{sA[1]}
        ds_write_b32 v66, v65
        """)
        k.wait_lg(0)
        for q in range(4):
            k(f"ds_read_b128 v[{68 + 4 * q}:{71 + 4 * q}], v67 offset:{32 * q}")
        self.reduce_add(ACC)
        for r in range(16):
            k(f"v_mul_f32 v{ACC + r}, v{ACC + r}, v{68 + r}")
        for d in range(8):
            k(f"v_cvt_pk_bf16_f32 v{84 + d}, v{ACC + 2 * d}, v{ACC + 2 * d + 1}")
        k(f"""
        s_lshl_b32 s{sA[1]}, s{sW}, 11
        s_add_u32 s{sA[1]}, s{sA[1]}, {PK}
        v_add_u32 v66, s{sA[1]}, v{vL16}
        v_add_u32 v67, {PK}, v{vL16}
        ds_write_b128 v66, v[84:87]
        ds_write_b128 v66, v[88:91] offset:1024
        """)
        k.wait_lg(0)
        k("s_barrier")
        for f in range(8):
            k(f"ds_read_b128 v[{96 + 4 * f}:{99 + 4 * f}], v67 offset:{1024 * f}")
        k(f"""
        v_lshlrev_b32 v66, 2, v{vLam}
        v_lshl_add_u32 v66, v{vH}, 16, v66
        s_lshl_b32 s{sA[1]}, s{sW}, 19
        s_lshl_b32 s{sA[2]}, s{sRho}, 10
        s_add_u32 s{sA[1]}, s{sA[1]}, s{sA[2]}
        s_lshl_b32 s{sA[2]}, s{sJ}, 7
        s_add_u32 s{sA[1]}, s{sA[1]}, s{sA[2]}
        s_add_u32 s{sA[1]}, s{sA[1]}, {Z + layer * 0x200000}
        """)
        for f in range(8):
            c = "v[0:15]" if f else "0"
            k(f"v_mfma_f32_32x32x16_bf16 v[0:15], a[{A_F1 + 4 * f}:{A_F1 + 4 * f + 3}], v[{96 + 4 * f}:{99 + 4 * f}], {c}")
        k.tag = "pub"
        for d in range(8):
            k(f"s_add_u32 s{sA[2]}, s{sA[1]}, {(4 * (d // 2) + d % 2) * 32768}")
            k(f"v_cvt_pk_bf16_f32 v{16 + d}, v{2 * d}, v{2 * d + 1}")
            k(f"buffer_store_dword v{16 + d}, v66, s[{S_WS}:{S_WS + 3}], s{sA[2]} offen sc1")
        k.tag = None
        self.stamp()

    V_B, V_A, V_R = 32, 48, 64

    def v_prepare(self, layer):
        k = self.k
        sK1, sCt, sMir = sA[8], sA[9], sA[10]
        k(f"""
        s_and_b32 s{sA[0]}, s{sW}, 1
        s_lshl_b32 s{sA[1]}, s{sA[0]}, 5
        s_add_u32 s{sK1}, s{sRho}, s{sA[1]}
        s_lshr_b32 s{sMir}, s{sW}, 1
        s_sub_u32 s{sA[2]}, 15, s{sJ}
        s_sub_u32 s{sA[3]}, 64, s{sK1}
        s_and_b32 s{sA[3]}, s{sA[3]}, 63
        s_cmp_lg_u32 s{sMir}, 0
        s_cselect_b32 s{sCt}, s{sA[2]}, s{sJ}
        s_cselect_b32 s{sA[3]}, s{sA[3]}, s{sK1}
        s_mov_b32 s{sA[4]}, {f32(1.0 / 2048)}
        s_cselect_b32 s{sA[4]}, {f32(-1.0 / 2048)}, s{sA[4]}
        s_cselect_b64 vcc, -1, 0
        s_lshl_b32 s{sA[11]}, s{sA[3]}, 15
        s_add_u32 s{sA[11]}, s{sA[11]}, {Z + layer * 0x200000}
        s_add_u32 s{sA[12]}, s{sTau}, s{sA[0]}
        v_lshrrev_b32 v2, 4, v{vLam}
        v_bfe_u32 v3, v{vLam}, 2, 1
        v_bfe_u32 v4, v{vLam}, 3, 1
        v_and_b32 v5, 3, v{vLam}
        v_lshl_add_u32 v5, v2, 4, v5
        v_lshl_add_u32 v5, v3, 3, v5
        v_lshl_add_u32 v5, v4, 2, v5
        s_lshl_b32 s{sA[5]}, s{sCt}, 5
        v_add_u32 v5, s{sA[5]}, v5
        v_sub_u32 v6, 512, v5
        v_and_b32 v6, 255, v6
        v_cndmask_b32 v6, v5, v6, vcc
        v_lshlrev_b32 v6, 2, v6
        v_lshl_add_u32 v6, v{vH}, 12, v6
        v_cmp_eq_u32 vcc, 0, v5
        v_mov_b32 v7, {OOB}
        v_lshl_add_u32 v8, v{vLam}, 6, s{sK1}
        v_cndmask_b32 v80, v6, v7, vcc
        v_cvt_f32_u32 v9, v8
        v_mul_f32 v9, s{sA[4]}, v9
        v_cvt_f32_u32 v10, v{vH}
        v_mul_f32 v10, 4.0, v10
        v_mul_f32 v10, v9, v10
        s_lshl_b32 s{sA[13]}, s{sA[12]}, 15
        s_lshl_b32 s{sA[6]}, s{sCt}, 11
        s_add_u32 s{sA[13]}, s{sA[13]}, s{sA[6]}
        """)
        R = self.V_R
        if layer == 0:
            k(f"""
            v_lshlrev_b32 v8, 10, v8
            v_lshl_add_u32 v8, v{vH}, 4, v8
            s_lshl_b32 s{sA[6]}, s{sCt}, 6
            buffer_load_dwordx4 v[{R}:{R + 3}], v8, s[{S_X}:{S_X + 3}], s{sA[6]} offen
            buffer_load_dwordx4 v[{R + 4}:{R + 7}], v8, s[{S_X}:{S_X + 3}], s{sA[6]} offen offset:32
            v_lshlrev_b32 v8, 5, v{vL}
            s_add_u32 s{sA[6]}, s{sA[13]}, {XA}
            buffer_load_dword v{vDum}, v8, s[{S_WS}:{S_WS + 3}], s{sA[6]} offen sc1
            s_lshl_b32 s{sA[6]}, s{sA[12]}, 12
            s_lshl_b32 s{sA[7]}, s{sCt}, 8
            s_add_u32 s{sA[6]}, s{sA[6]}, s{sA[7]}
            s_add_u32 s{sA[6]}, s{sA[6]}, {ST}
            v_lshlrev_b32 v8, 2, v{vL}
            buffer_load_dword v{vDum}, v8, s[{S_WS}:{S_WS + 3}], s{sA[6]} offen sc1
            s_lshl_b32 s{sA[6]}, s{sC}, 8
            s_add_u32 s{sA[6]}, s{sA[6]}, {LF}
            buffer_load_dword v{vDum}, v8, s[{S_WS}:{S_WS + 3}], s{sA[6]} offen sc1
            """)
        else:
            k(f"""
            s_add_u32 s{sA[6]}, s{sA[13]}, {XB}
            buffer_load_dwordx4 v[{R}:{R + 3}], v{vL16}, s[{S_WS}:{S_WS + 3}], s{sA[6]} offen sc1
            buffer_load_dwordx4 v[{R + 4}:{R + 7}], v{vL16}, s[{S_WS}:{S_WS + 3}], s{sA[6]} offen offset:1024 sc1
            """)
        for ks in range(4):
            for r in range(4):
                k(f"v_fmamk_f32 v{12 + r}, v9, {f32(float(8 * ks + r))}, v10")
            for r in range(4):
                k(f"v_cos_f32 v{16 + r}, v{12 + r}")
                k(f"v_sin_f32 v{20 + r}, v{12 + r}")
            for r in range(4):
                k(f"v_cvt_pk_bf16_f32 v{self.V_B + 4 * ks + r}, v{16 + r}, v{20 + r}")

    def z_sync(self, layer):
        k = self.k
        k.wait_tag("pub")
        k("s_barrier")
        lab = k.newlabel("zs")
        snap = k.snapshot()
        zf = ZF + layer * 0x10000
        k(f"""
        s_cmp_lg_u32 s{sW}, 0
        s_cbranch_scc1 {lab}_join
        s_lshl_b32 s{sA[1]}, s{sJ}, 5
        s_add_u32 s{sA[2]}, s{sA[1]}, s{sRho}
        s_lshl_b32 s{sA[2]}, s{sA[2]}, 8
        s_add_u32 s{sA[2]}, s{sA[2]}, {zf}
        """)
        self.flag_store(sA[2], 1, "sc1")
        if layer == 0:
            k(f"""
            s_lshl_b32 s{sA[2]}, s{sC}, 8
            s_add_u32 s{sA[2]}, s{sA[2]}, {XF}
            v_lshl_add_u32 v6, v{vLam}, 3, s{sA[2]}
            """)
            self.poll(6, 8)
            k(f"""
            s_add_u32 s{sA[0]}, s{sA[0]}, s{sXcc}
            v_cmp_ne_u32 vcc, s{sA[0]}, v2
            s_cmp_lg_u64 vcc, 0
            s_cselect_b32 s{sA[0]}, 1, {1 if self.force_slow else 0}
            v_mov_b32 v2, s{sA[0]}
            v_mov_b32 v3, {SB + 65532}
            ds_write_b32 v3, v2
            """)
            k.wait_lg(0)
        k(f"""
        v_add_u32 v6, s{sA[1]}, v{vL}
        v_and_b32 v6, 255, v6
        v_lshlrev_b32 v6, 8, v6
        v_add_u32 v6, {zf}, v6
        """)
        self.poll(6, 1)
        k.label(f"{lab}_join")
        k.restore(snap)
        k("s_barrier")
        if layer == 0:
            k(f"""
            v_mov_b32 v3, {SB + 65532}
            ds_read_b32 v2, v3
            v_readfirstlane_b32 s{sSlow}, v2
            """)
        self.stamp()

    def v_compute(self, layer):
        k = self.k
        A, B, R = self.V_A, self.V_B, self.V_R
        for ks in range(4):
            k(f"s_add_u32 s{sA[0]}, s{sA[11]}, {ks * 8192}")
            for r in range(4):
                k(f"buffer_load_dword v{A + 4 * ks + r}, v80, s[{S_WS}:{S_WS + 3}], s{sA[0]} offen offset:{1024 * r} sc1")
        for d in range(8):
            k(f"v_lshlrev_b32 v{2 * d}, 16, v{R + d}")
            k(f"v_and_b32 v{2 * d + 1}, 0xffff0000, v{R + d}")
        for ks in range(4):
            k(f"v_mfma_f32_32x32x16_bf16 v[0:15], v[{A + 4 * ks}:{A + 4 * ks + 3}], v[{B + 4 * ks}:{B + 4 * ks + 3}], v[0:15]")
        k(f"""
        s_add_u32 s{sA[0]}, s{sA[13]}, {XA}
        s_lshl_b32 s{sA[1]}, s{sA[12]}, 12
        s_lshl_b32 s{sA[2]}, s{sA[9]}, 8
        s_add_u32 s{sA[1]}, s{sA[1]}, s{sA[2]}
        s_add_u32 s{sA[1]}, s{sA[1]}, {ST}
        v_lshlrev_b32 v28, 3, v{vLam}
        v_lshl_add_u32 v28, v{vH}, 30, v28
        """)
        k.tag = "pub"
        for d in range(8):
            k(f"v_cvt_pk_bf16_f32 v{16 + d}, v{2 * d}, v{2 * d + 1}")
        k(f"buffer_store_dwordx4 v[16:19], v{vL16}, s[{S_WS}:{S_WS + 3}], s{sA[0]} offen")
        k(f"buffer_store_dwordx4 v[20:23], v{vL16}, s[{S_WS}:{S_WS + 3}], s{sA[0]} offen offset:1024")
        k("v_add_f32 v24, v0, v1")
        k("v_mul_f32 v25, v0, v0")
        k("v_fmac_f32 v25, v1, v1")
        for r in range(2, 16):
            k(f"v_add_f32 v24, v24, v{r}")
            k(f"v_fmac_f32 v25, v{r}, v{r}")
        k(f"""
        v_mov_b32 v26, v24
        v_mov_b32 v27, v25
        v_permlane32_swap_b32 v24, v26
        v_permlane32_swap_b32 v25, v27
        v_add_f32 v24, v24, v26
        v_add_f32 v25, v25, v27
        buffer_store_dwordx2 v[24:25], v28, s[{S_WS}:{S_WS + 3}], s{sA[1]} offen
        """)
        k.tag = None
        self.stamp()

    def load_gu(self):
        k = self.k
        k(f"""
        s_lshl_b32 s{sA[0]}, s{sT0}, 5
        s_mul_i32 s{sA[1]}, s{sW}, {16 * 2752}
        s_add_u32 s{sA[0]}, s{sA[0]}, s{sA[1]}
        s_mov_b32 s{sA[2]}, 2752
        v_mov_b32 v20, s{S_WG}
        v_mov_b32 v21, s{S_WG + 1}
        v_mov_b32 v22, s{S_WU}
        v_mov_b32 v23, s{S_WU + 1}
        """)
        for p in range(3):
            k(f"""
            v_add_u32 v2, {64 * p}, v{vL}
            v_mul_u32_u24 v3, 0x1556, v2
            v_lshrrev_b32 v3, 16, v3
            v_mul_u32_u24 v4, 12, v3
            v_sub_u32 v4, v2, v4
            v_cmp_lt_u32 vcc, 5, v4
            v_subrev_u32 v5, 6, v4
            v_mul_lo_u32 v3, v3, s{sA[2]}
            v_cndmask_b32 v4, v4, v5, vcc
            v_cndmask_b32 v6, v20, v22, vcc
            v_cndmask_b32 v7, v21, v23, vcc
            v_lshl_add_u32 v3, v4, 4, v3
            v_add_u32 v3, s{sA[0]}, v3
            v_add_co_u32 v{10 + 2 * p}, vcc, v6, v3
            v_addc_co_u32 v{11 + 2 * p}, vcc, 0, v7, vcc
            """)
        k(f"s_mul_i32 s{sA[3]}, s{sW}, 3072")
        k.tag = "gu"
        for n in range(8):
            for p in range(3):
                k(f"s_add_u32 m0, s{sA[3]}, {n * 12288 + p * 1024}")
                if n:
                    k(f"v_add_co_u32 v{10 + 2 * p}, vcc, {64 * 2752}, v{10 + 2 * p}")
                    k(f"v_addc_co_u32 v{11 + 2 * p}, vcc, 0, v{11 + 2 * p}, vcc")
                k(f"global_load_lds_dwordx4 v[{10 + 2 * p}:{11 + 2 * p}], off")
        k.tag = None
        k(f"""
        v_bfe_u32 v2, v{vL}, 2, 2
        v_lshl_add_u32 v2, v{vH}, 3, v2
        v_mul_u32_u24 v2, 192, v2
        v_bfe_u32 v3, v{vL}, 4, 1
        v_mul_u32_u24 v3, 96, v3
        v_and_b32 v4, 3, v{vL}
        v_lshl_add_u32 v2, v4, 3, v2
        v_add_u32 v{vTrY}, v2, v3
        v_add_u32 v{vTrY2}, 49152, v{vTrY}
        """)

    def tr_gu(self, dst, T, ks):
        base = vTrY if ks < 16 else vTrY2
        off = (ks % 16) * 3072 + T * 32
        self.k(f"ds_read_b64_tr_b16 v[{dst}:{dst + 1}], v{base} offset:{off}")
        self.k(f"ds_read_b64_tr_b16 v[{dst + 2}:{dst + 3}], v{base} offset:{off + 768}")

    def colsum(self):
        k = self.k
        CS = SB + 49152
        k.wait_tag("gu")
        for r in range(4):
            k(f"v_mov_b32 v{64 + r}, s{sOnes}")
        k(f"""
        s_mul_i32 s{sA[0]}, s{sW}, 3072
        v_add_u32 v60, s{sA[0]}, v{vTrY}
        v_add_u32 v61, s{sA[0]}, v{vTrY2}
        """)
        for n in range(8):
            for T in range(3):
                b = 68 + 4 * ((3 * n + T) % 6)
                base = 60 if n < 4 else 61
                off = (n % 4) * 12288 + T * 32
                k(f"ds_read_b64_tr_b16 v[{b}:{b + 1}], v{base} offset:{off}")
                k(f"ds_read_b64_tr_b16 v[{b + 2}:{b + 3}], v{base} offset:{off + 768}")
                c = f"v[{16 * T}:{16 * T + 15}]" if n else "0"
                k(f"v_mfma_f32_32x32x16_bf16 v[{16 * T}:{16 * T + 15}], v[64:67], v[{b}:{b + 3}], {c}")
        k(f"""
        s_lshl_b32 s{sA[0]}, s{sW}, 2
        s_add_u32 s{sA[0]}, s{sA[0]}, {CS}
        v_lshl_add_u32 v60, v{vLam}, 4, s{sA[0]}
        v_lshlrev_b32 v61, 4, v{vLam}
        v_add_u32 v61, {CS}, v61
        """)
        for T in range(3):
            k(f"ds_write_b32 v60, v{16 * T} offset:{512 * T}")
        k.wait_lg(0)
        k("s_barrier")
        for T in range(3):
            k(f"ds_read_b128 v[{4 * T}:{4 * T + 3}], v61 offset:{512 * T}")
        k(f"v_cmp_eq_u32 vcc, 0, v{vH}")
        for T in range(3):
            b = 4 * T
            k(f"""
            v_add_f32 v{b}, v{b}, v{b + 1}
            v_add_f32 v{b + 2}, v{b + 2}, v{b + 3}
            v_add_f32 v{b}, v{b}, v{b + 2}
            v_cvt_pk_bf16_f32 v{b + 1}, v{b}, 0
            v_lshlrev_b32 v{b + 2}, 16, v{b + 1}
            v_sub_f32 v{b + 2}, v{b}, v{b + 2}
            v_cvt_pk_bf16_f32 v{b + 2}, v{b}, v{b + 2}
            v_cndmask_b32 v{b + 1}, 0, v{b + 1}, vcc
            v_cndmask_b32 v{b + 2}, 0, v{b + 2}, vcc
            v_accvgpr_write_b32 a{A_CORR + b}, v{b + 2}
            v_accvgpr_write_b32 a{A_CORR + b + 1}, v{b + 1}
            v_accvgpr_write_b32 a{A_CORR + b + 2}, 0
            v_accvgpr_write_b32 a{A_CORR + b + 3}, 0
            """)

    def load_wd(self):
        k = self.k
        k(f"""
        v_lshrrev_b32 v2, 3, v{vL}
        v_and_b32 v3, 7, v{vL}
        v_lshlrev_b32 v2, 10, v2
        v_lshl_add_u32 v2, v3, 4, v2
        s_lshl_b32 s{sA[0]}, s{sJ}, 7
        v_add_u32 v2, s{sA[0]}, v2
        s_mul_i32 s{sA[1]}, s{sW}, {22 * 16384}
        s_lshl_b32 s{sA[2]}, s{sW}, 14
        s_add_u32 s{sA[2]}, s{sA[2]}, {SB}
        v_bfe_u32 v3, v{vL}, 2, 2
        v_lshl_add_u32 v3, v{vH}, 2, v3
        v_lshlrev_b32 v3, 7, v3
        v_bfe_u32 v4, v{vL}, 4, 1
        v_lshl_add_u32 v3, v4, 5, v3
        v_and_b32 v4, 1, v{vL}
        v_lshl_add_u32 v3, v4, 4, v3
        v_bfe_u32 v4, v{vL}, 1, 1
        v_lshl_add_u32 v3, v4, 3, v3
        s_and_b32 s{sA[3]}, s{sW}, 1
        s_lshl_b32 s{sA[3]}, s{sA[3]}, 6
        s_add_u32 s{sA[4]}, s{sA[2]}, s{sA[3]}
        s_xor_b32 s{sA[3]}, s{sA[3]}, 64
        s_add_u32 s{sA[5]}, s{sA[2]}, s{sA[3]}
        v_add_u32 v4, s{sA[4]}, v3
        v_add_u32 v5, s{sA[5]}, v3
        """)
        for k0, n in ((0, 6), (6, 6), (12, 5), (17, 5)):
            k.wait_lg(0)
            k.tag = "wd"
            for kk in range(n):
                for p in range(2):
                    k(f"s_add_u32 m0, s{sA[2]}, {(2 * kk + p) * 1024}")
                    k(f"s_add_u32 s{sA[6]}, s{sA[1]}, {(k0 + kk) * 16384 + p * 8192}")
                    k(f"buffer_load_dwordx4 v2, s[{S_WD}:{S_WD + 3}], s{sA[6]} offen lds")
            k.tag = None
            k.wait_tag("wd")
            for kk in range(n):
                for pm in range(2):
                    d = A_WD + 8 * (k0 + kk) + 4 * pm
                    k(f"ds_read_b64_tr_b16 a[{d}:{d + 1}], v{4 + pm} offset:{2048 * kk}")
                    k(f"ds_read_b64_tr_b16 a[{d + 2}:{d + 3}], v{4 + pm} offset:{2048 * kk + 1024}")
        k.wait_lg(0)

    def x1reg(self, ks):
        if ks < 8:
            return f"a[{A_X1 + 4 * ks}:{A_X1 + 4 * ks + 3}]"
        r = 152 + 4 * (ks - 8)
        return f"v[{r}:{r + 3}]"

    def y_stats_load(self, dst, ps):
        k = self.k
        k(f"""
        s_lshl_b32 s{sA[0]}, s{sC}, 3
        s_add_u32 s{sA[0]}, s{sA[0]}, s{sW}
        s_add_u32 s{sA[0]}, s{sA[0]}, {4 * ps}
        s_lshl_b32 s{sA[0]}, s{sA[0]}, 12
        s_add_u32 s{sA[0]}, s{sA[0]}, {ST}
        """)
        for q in range(8):
            k(f"buffer_load_dwordx2 v[{dst + 2 * q}:{dst + 2 * q + 1}], v150, s[{S_WS}:{S_WS + 3}], s{sA[0]} offen offset:{256 * q} sc1")

    def y_stats_ops(self, src, vq, vc, vcor):
        o = []
        for q in range(1, 8):
            o.append(f"v_add_f32 v{src}, v{src}, v{src + 2 * q}")
            o.append(f"v_add_f32 v{src + 1}, v{src + 1}, v{src + 2 * q + 1}")
        o += [f"v_mov_b32 v{src + 2}, v{src}", f"v_mov_b32 v{src + 3}, v{src + 1}", "s_nop 0",
              f"v_permlane32_swap_b32 v{src}, v{src + 2}", f"v_permlane32_swap_b32 v{src + 1}, v{src + 3}",
              f"v_add_f32 v{src}, v{src}, v{src + 2}", f"v_add_f32 v{src + 1}, v{src + 1}, v{src + 3}",
              f"v_mul_f32 v{src}, 0xbb000000, v{src}",
              f"v_mul_f32 v{src + 2}, v{src}, v{src}",
              f"v_fma_f32 v{src + 1}, v{src + 1}, {POW2M9}, -v{src + 2}",
              f"v_max_f32 v{src + 1}, 0, v{src + 1}",
              f"v_add_f32 v{vq}, 0x3727c5ac, v{src + 1}",
              f"v_rsq_f32 v{vc}, v{vq}",
              f"v_cvt_pk_bf16_f32 v{vcor}, v{src}, v{src}",
              f"v_mul_f32 v{vc}, 0xbfb8aa3b, v{vc}",
              f"v_lshlrev_b32 v{src + 2}, 16, v{vcor}",
              f"v_sub_f32 v{src + 2}, v{src}, v{src + 2}",
              f"v_cvt_pk_bf16_f32 v{vcor + 1}, v{src + 2}, 0",
              f"v_mov_b32 v{vcor + 2}, 0", f"v_mov_b32 v{vcor + 3}, 0"]
        return o

    def y_epilogue_ops(self, acc, vq, vc, tmp, out, soff, imm):
        o = []
        for half in range(2):
            g = [acc + 4 * half + i for i in range(4)]
            o += [f"v_mul_f32 v{tmp + i}, v{g[i]}, v{vc}" for i in range(4)]
            o += [f"v_exp_f32 v{tmp + i}, v{tmp + i}" for i in range(4)]
            o += [f"v_mul_f32 v{g[i]}, v{g[i]}, v{g[i] + 8}" for i in range(4)]
            o += [f"v_fma_f32 v{tmp + i}, v{tmp + i}, v{vq}, v{vq}" for i in range(4)]
            o += [f"v_rcp_f32 v{tmp + i}, v{tmp + i}" for i in range(4)]
            o += [f"v_mul_f32 v{g[i]}, v{g[i]}, v{tmp + i}" for i in (0, 1, 2, 3)]
            o += [f"v_cvt_pk_bf16_f32 v{out + 2 * half}, v{g[0]}, v{g[1]}",
                  f"v_cvt_pk_bf16_f32 v{out + 2 * half + 1}, v{g[2]}, v{g[3]}"]
        o.append(f"buffer_store_dwordx4 v[{out}:{out + 3}], v{vL16}, s[{S_WS}:{S_WS + 3}], s{soff} offen offset:{imm}")
        return o

    def y_phase(self, layer):
        k = self.k
        sX = sA[4]
        k(f"""
        s_lshl_b32 s{sA[1]}, s{sC}, 3
        s_add_u32 s{sA[1]}, s{sA[1]}, s{sW}
        s_lshl_b32 s{sX}, s{sA[1]}, 15
        s_add_u32 s{sX}, s{sX}, {XA}
        s_mul_i32 s{sA[2]}, s{sA[1]}, 86
        s_add_u32 s{sA[2]}, s{sA[2]}, s{sT0}
        s_lshl_b32 s{sA[2]}, s{sA[2]}, 10
        s_add_u32 s{sA[2]}, s{sA[2]}, {H}
        s_add_u32 s{sA[3]}, s{sA[2]}, {4 * 86 * 1024}
        v_lshlrev_b32 v150, 3, v{vLam}
        v_lshl_add_u32 v150, v{vH}, 11, v150
        """)

        def load_x1(ks, ps):
            if ks % 4 == 0:
                k(f"s_add_u32 s{sA[5]}, s{sX}, {ps * 4 * 32768 + ks * 1024}")
            k(f"buffer_load_dwordx4 {self.x1reg(ks)}, v{vL16}, s[{S_WS}:{S_WS + 3}], s{sA[5]} offen offset:{1024 * (ks % 4)} sc1")

        for ks in range(32):
            load_x1(ks, 0)
        self.y_stats_load(104, 0)
        if layer == 0:
            k(f"v_mul_u32_u24 v151, 48, v{vL}")
            k(f"buffer_load_dword v{vDum}, v151, s[{S_WS}:{S_WS + 3}], s{sA[2]} offen sc1")
            k(f"buffer_load_dword v{vDum}, v151, s[{S_WS}:{S_WS + 3}], s{sA[3]} offen sc1")
        AB, NB = 80, 6
        seq = [(ks, T) for ks in range(32) for T in range(3)] + [(ks, T) for T in range(3) for ks in range(32)]
        acc_of = lambda n, T: 16 * T if n < 96 else (48, 64, 0)[T]
        Q1, C1, Q2, C2, COR1, COR2, TMP, OUT = 120, 121, 122, 123, 124, 128, 132, 136
        PF = 4
        for n in range(PF):
            self.tr_gu(AB + 4 * (n % NB), seq[n][1], seq[n][0])
        fill = []
        for n, (ks, T) in enumerate(seq):
            acc = acc_of(n, T)
            first = ks == 0
            b = AB + 4 * (n % NB)
            c = "0" if first else f"v[{acc}:{acc + 15}]"
            k(f"v_mfma_f32_32x32x16_bf16 v[{acc}:{acc + 15}], v[{b}:{b + 3}], {self.x1reg(ks)}, {c}")
            if n + PF < len(seq):
                self.tr_gu(AB + 4 * ((n + PF) % NB), seq[n + PF][1], seq[n + PF][0])
            if n < 96 and T == 2:
                load_x1(ks, 1)
            if n == 60:
                fill += self.y_stats_ops(104, Q1, C1, COR1)
            if n == 90:
                self.y_stats_load(104, 1)
            if ks == 31:
                cor = COR1 if n < 96 else COR2
                k(f"v_mfma_f32_32x32x16_bf16 v[{acc}:{acc + 15}], a[{A_CORR + 4 * T}:{A_CORR + 4 * T + 3}], v[{cor}:{cor + 3}], v[{acc}:{acc + 15}]")
            if n == 99:
                for T1 in range(3):
                    fill += self.y_epilogue_ops(16 * T1, Q1, C1, TMP, OUT + 4 * (T1 % 2), sA[2], 1024 * T1)
                fill = fill[:26] + self.y_stats_ops(104, Q2, C2, COR2) + fill[26:]
            if n == 131:
                fill += self.y_epilogue_ops(48, Q2, C2, TMP, OUT + 4, sA[3], 0)
            if n == 163:
                fill += self.y_epilogue_ops(64, Q2, C2, TMP, OUT, sA[3], 1024)
            k.tag = "pub"
            for _ in range(3 + n % 2):
                if fill:
                    k(fill.pop(0))
            k.tag = None
        k.tag = "pub"
        for o in fill + self.y_epilogue_ops(0, Q2, C2, TMP, OUT + 4, sA[3], 2048):
            k(o)
        k.tag = None
        self.stamp()

    def x_phase(self, layer):
        k = self.k
        RES = 64
        k(f"""
        s_lshr_b32 s{sA[0]}, s{sW}, 1
        s_add_u32 s{sA[1]}, s{sTau}, s{sA[0]}
        s_xor_b32 s{sA[2]}, s{sA[0]}, 1
        s_add_u32 s{sA[2]}, s{sTau}, s{sA[2]}
        s_mul_i32 s{sA[3]}, s{sW}, 22
        s_mul_i32 s{sA[4]}, s{sA[1]}, 86
        s_mul_i32 s{sA[5]}, s{sA[2]}, 86
        s_add_u32 s{sA[4]}, s{sA[4]}, s{sA[3]}
        s_add_u32 s{sA[5]}, s{sA[5]}, s{sA[3]}
        s_lshl_b32 s{sA[4]}, s{sA[4]}, 10
        s_lshl_b32 s{sA[5]}, s{sA[5]}, 10
        s_add_u32 s{sA[4]}, s{sA[4]}, {H}
        s_add_u32 s{sA[5]}, s{sA[5]}, {H}
        s_cmp_eq_u32 s{sW}, 3
        s_cselect_b32 s{sA[6]}, {OOB}, 20480
        s_lshl_b32 s{sA[7]}, s{sA[1]}, 15
        s_lshl_b32 s{sA[8]}, s{sJ}, 12
        s_add_u32 s{sA[7]}, s{sA[7]}, s{sA[8]}
        s_and_b32 s{sA[8]}, s{sW}, 1
        s_lshl_b32 s{sA[9]}, s{sA[8]}, 11
        s_add_u32 s{sA[7]}, s{sA[7]}, s{sA[9]}
        """)
        RING, NR = 72, 28
        seq = [(pu, kk) for pu in range(2) for kk in range(22)]

        def load_h(n):
            pu, kk = seq[n]
            if kk % 4 == 0:
                if kk == 20:
                    k(f"s_add_u32 s{sA[10]}, s{sA[4 + pu]}, s{sA[6]}")
                else:
                    k(f"s_add_u32 s{sA[10]}, s{sA[4 + pu]}, {kk * 1024}")
            r = RING + 4 * (n % NR)
            k(f"buffer_load_dwordx4 v[{r}:{r + 3}], v{vL16}, s[{S_WS}:{S_WS + 3}], s{sA[10]} offen offset:{1024 * (kk % 4)} sc1")

        for n in range(NR):
            load_h(n)
        k(f"s_add_u32 s{sA[11]}, s{sA[7]}, {XA}")
        k(f"buffer_load_dwordx4 v[{RES}:{RES + 3}], v{vL16}, s[{S_WS}:{S_WS + 3}], s{sA[11]} offen sc1")
        k(f"buffer_load_dwordx4 v[{RES + 4}:{RES + 7}], v{vL16}, s[{S_WS}:{S_WS + 3}], s{sA[11]} offen offset:1024 sc1")
        for n, (pu, kk) in enumerate(seq):
            r = RING + 4 * (n % NR)
            for pm in range(2):
                d = 16 * (2 * pu + pm)
                c = f"v[{d}:{d + 15}]" if kk else "0"
                a0 = A_WD + 8 * kk + 4 * pm
                k(f"v_mfma_f32_32x32x16_bf16 v[{d}:{d + 15}], a[{a0}:{a0 + 3}], v[{r}:{r + 3}], {c}")
            if n + NR < len(seq):
                load_h(n + NR)
        self.stamp()
        self.reduce_send(0)
        k.wait_lg(0)
        k("s_barrier")
        self.reduce_recv(0)
        for d in range(8):
            k(f"v_lshlrev_b32 v{72 + 2 * d}, 16, v{RES + d}")
            k(f"v_and_b32 v{73 + 2 * d}, 0xffff0000, v{RES + d}")
        for r in range(16):
            k(f"v_add_f32 v{r}, v{r}, v{72 + r}")
        self.reduce_add(0)
        for d in range(8):
            k(f"v_cvt_pk_bf16_f32 v{16 + d}, v{2 * d}, v{2 * d + 1}")
        k.tag = "pub"
        if layer == 0:
            k(f"s_add_u32 s{sA[11]}, s{sA[7]}, {XB}")
            k(f"buffer_store_dwordx4 v[16:19], v{vL16}, s[{S_WS}:{S_WS + 3}], s{sA[11]} offen")
            k(f"buffer_store_dwordx4 v[20:23], v{vL16}, s[{S_WS}:{S_WS + 3}], s{sA[11]} offen offset:1024")
        else:
            k(f"""
            v_lshlrev_b32 v24, 16, v{vLam}
            v_lshl_add_u32 v24, v{vH}, 4, v24
            s_lshr_b32 s{sA[0]}, s{sW}, 1
            s_lshl_b32 s{sA[0]}, s{sA[0]}, 5
            s_add_u32 s{sA[0]}, s{sA[0]}, s{sRho}
            s_lshl_b32 s{sA[0]}, s{sA[0]}, 10
            s_lshl_b32 s{sA[1]}, s{sJ}, 7
            s_lshl_b32 s{sA[2]}, s{sA[8]}, 6
            s_add_u32 s{sA[0]}, s{sA[0]}, s{sA[1]}
            s_add_u32 s{sA[0]}, s{sA[0]}, s{sA[2]}
            buffer_store_dwordx4 v[16:19], v24, s[{S_OUT}:{S_OUT + 3}], s{sA[0]} offen
            buffer_store_dwordx4 v[20:23], v24, s[{S_OUT}:{S_OUT + 3}], s{sA[0]} offen offset:32
            """)
        k.tag = None
        self.stamp()

    def touch_xb(self):
        k = self.k
        k(f"""
        s_lshr_b32 s{sA[0]}, s{sW}, 1
        s_add_u32 s{sA[0]}, s{sTau}, s{sA[0]}
        s_lshl_b32 s{sA[0]}, s{sA[0]}, 15
        s_lshl_b32 s{sA[1]}, s{sJ}, 12
        s_add_u32 s{sA[0]}, s{sA[0]}, s{sA[1]}
        s_and_b32 s{sA[1]}, s{sW}, 1
        s_lshl_b32 s{sA[1]}, s{sA[1]}, 11
        s_add_u32 s{sA[0]}, s{sA[0]}, s{sA[1]}
        s_add_u32 s{sA[0]}, s{sA[0]}, {XB}
        v_lshlrev_b32 v2, 5, v{vL}
        buffer_load_dword v{vDum}, v2, s[{S_WS}:{S_WS + 3}], s{sA[0]} offen sc1
        """)

    def body(self):
        k = self.k
        self.prologue()
        self.w_load_a(0)
        self.w_load_b()
        self.publish_xcc()
        self.gen_f1()
        for layer in range(2):
            self.w_compute(layer)
            self.v_prepare(layer)
            if layer == 0:
                self.load_gu()
                self.touch_xb()
            self.z_sync(layer)
            if self.done(f"W{layer}"):
                return
            self.v_compute(layer)
            if layer == 0:
                self.load_wd()
                k("s_barrier")
                self.colsum()
            self.local_sync(1 + 3 * layer, "all")
            self.stamp()
            if self.done(f"V{layer}"):
                return
            self.y_phase(layer)
            self.local_sync(2 + 3 * layer, "all")
            self.stamp()
            if self.done(f"Y{layer}"):
                return
            self.x_phase(layer)
            if layer == 0:
                self.w_load_b()
                self.local_sync(3, "block")
                self.stamp()
                if self.done("X0"):
                    return
                self.w_load_a(1)

    def build(self):
        k = self.k
        self.body()
        k.label("L_fin")
        k(f"""
        s_or_b32 s{sA[0]}, s2, s{sW}
        s_cmp_lg_u32 s{sA[0]}, 0
        s_cbranch_scc1 L_nobump
        s_add_u32 s{sA[0]}, s{S_N}, 16
        v_mov_b32 v2, s{sA[0]}
        v_mov_b32 v3, {NONCE}
        s_mov_b64 exec, 1
        buffer_store_dword v2, v3, s[{S_WS}:{S_WS + 3}], 0 offen sc1
        s_mov_b64 exec, -1
        L_nobump:
        """)
        if self.prof:
            k.wait_vm(0)
            self.stamp()
            k(f"""
            v_writelane_b32 v{vProf}, s{sTo}, 62
            v_writelane_b32 v{vProf}, s{sSlow}, 63
            s_lshl_b32 s{sA[0]}, s2, 2
            s_add_u32 s{sA[0]}, s{sA[0]}, s{sW}
            s_lshl_b32 s{sA[0]}, s{sA[0]}, 8
            s_add_u32 s{sA[0]}, s{sA[0]}, {PROF}
            v_lshlrev_b32 v2, 2, v{vL}
            buffer_store_dword v{vProf}, v2, s[{S_WS}:{S_WS + 3}], s{sA[0]} offen
            """)
        k.label("L_end")
        k("s_endpgm")
        tail = ".fill 16896, 4, 0xbf800000\n"
        txt = build_file([k], [(NAME, (256, 1, 1), (256, 1, 1), LDS_BYTES)], tail_text=tail)
        return txt


import struct


def f32(x):
    return hex(struct.unpack("<I", struct.pack("<f", x))[0])


POW2M9 = f"s{45}"

if __name__ == "__main__":
    import argparse
    ap = argparse.ArgumentParser()
    ap.add_argument("out")
    ap.add_argument("--stop")
    ap.add_argument("--prof", action="store_true")
    ap.add_argument("--slow", action="store_true")
    a_ = ap.parse_args()
    g = Gen(a_.stop, a_.prof, a_.slow)
    open(a_.out, "w").write(g.build())
    print("instructions:", len(g.k.lines), "padding states:", g.k.nops)
```
